```python
import torch

def _softmax(x, axis=-1):
    return torch.softmax(x, dim=axis)
def _gelu(x):
    return torch.nn.functional.gelu(x, approximate="tanh")
def _silu(x):
    return torch.nn.functional.silu(x)
def _sigmoid(x):
    return torch.sigmoid(x)
def _layernorm(x, axis=-1, eps=1e-5):
    m = x.mean(dim=axis, keepdim=True)
    v = x.var(dim=axis, keepdim=True, unbiased=False)
    return (x - m) / torch.sqrt(v + eps)
def _scatter_add(tgt, idx, src, axis=0):
    return tgt.clone().index_add_(axis, idx, src)
def _segment_sum(src, seg, n):
    out = torch.zeros((n,) + src.shape[1:], dtype=src.dtype)
    return out.index_add_(0, seg, src)
def _pad(x, pw):
    flat = tuple(v for pair in reversed(pw) for v in pair)
    return torch.nn.functional.pad(x, flat)

kernel_name = 'parallel_sum__ssm_conv_h3__dense_activation_gelu__prompt'

def setup_inputs():

    _w = (lambda a: (lambda t: t.to(torch.bfloat16) if t.is_floating_point() else t)(torch.as_tensor(a)))
    def _A_setup():
        B, S, D = 1, 2048, 640
        ks = 4
        return {
            "q": _w((lambda *s: torch.randn(*s, dtype=torch.bfloat16) * 0.05)(B, S, D)),
            "k": _w((lambda *s: torch.randn(*s, dtype=torch.bfloat16) * 0.2)(B, S, D)),
            "v": _w((lambda *s: torch.randn(*s, dtype=torch.bfloat16) * 0.2)(B, S, D)),
            "shift_k": _w((lambda *s: torch.randn(*s, dtype=torch.bfloat16) * 0.2)(D, ks) * 0.5),
            "ssm_k": _w((lambda *s: torch.randn(*s, dtype=torch.bfloat16) * 0.8)(D, S) * (1.0 / S ** 0.5)),
            "ssm_D": _w((lambda *s: torch.randn(*s, dtype=torch.bfloat16) * 0.2)(D)),
        }
    _A_in = _A_setup()

    def _B_setup():
        B, S, D, F = 1, 2048, 640, 1536
        return {
            "x": _w((lambda *s: torch.randn(*s, dtype=torch.bfloat16) * 0.05)(B, S, D)),
            "w1": _w((lambda *s: torch.randn(*s, dtype=torch.bfloat16) * 0.4)(D, F) * (D ** -0.5)),
            "b1": _w((lambda *s: torch.randn(*s, dtype=torch.bfloat16) * 12.8)(F) * 0.01),
            "w2": _w((lambda *s: torch.randn(*s, dtype=torch.bfloat16) * 0.2)(F, D) * (F ** -0.5)),
            "b2": _w((lambda *s: torch.randn(*s, dtype=torch.bfloat16) * 3.2)(D) * 0.01),
        }
    _B_in = _B_setup()

    return {
        "A_q": _A_in["q"],
        "A_k": _A_in["k"],
        "A_v": _A_in["v"],
        "A_shift_k": _A_in["shift_k"],
        "A_ssm_k": _A_in["ssm_k"],
        "A_ssm_D": _A_in["ssm_D"],
        "B_x": _B_in["x"],
        "B_w1": _B_in["w1"],
        "B_b1": _B_in["b1"],
        "B_w2": _B_in["w2"],
        "B_b2": _B_in["b2"],
    }

def reference(A_q, A_k, A_v, A_shift_k, A_ssm_k, A_ssm_D, B_x, B_w1, B_b1, B_w2, B_b2):
    def _A_ref(q, k, v, shift_k, ssm_k, ssm_D):
        B, S, D = q.shape
        ks = shift_k.shape[-1]
        k_pad = _pad(k, ((0, 0), (ks - 1, 0), (0, 0)))
        k_shift = torch.zeros_like(k)
        for t in range(ks):
            k_shift = k_shift + k_pad[:, t:t + S, :] * shift_k[:, ks - 1 - t][None, None, :]
        kv = k_shift * v
        L = 2 * S
        kv_pad = _pad(kv, ((0, 0), (0, S), (0, 0)))
        kf_pad = _pad(ssm_k, ((0, 0), (0, S)))
        kv_f = (lambda x, axes=(-2,-1): torch.fft.rfft2(x.float(), dim=axes))(kv_pad[:, None, :, :], axes=(1, 2))
        kf_f = (lambda x, axes=(-2,-1): torch.fft.rfft2(x.float(), dim=axes))(kf_pad[:, None, :], axes=(1, 2))
        kf_f = (lambda x, *d: x.permute(*d))(kf_f, 1, 2, 0)
        y_f = kv_f * kf_f[None, :, :, :]
        y = (lambda x, s, axes=(-2,-1): torch.fft.irfft2(x, s=s, dim=axes).to(torch.bfloat16))(y_f, (1, L), axes=(1, 2))[:, 0, :S, :]
        y = y + kv * ssm_D[None, None, :]
        return q * y

    def _B_ref(x, w1, b1, w2, b2):
        h = torch.einsum("bsd,df->bsf", x, w1) + b1
        h = _gelu(h)
        return torch.einsum("bsf,fd->bsd", h, w2) + b2

    x = A_q
    xn = _layernorm(x, axis=-1)
    return x + _A_ref(xn, A_k, A_v, A_shift_k, A_ssm_k, A_ssm_D) + _B_ref(xn, B_w1, B_b1, B_w2, B_b2)
```

```python
import struct
NAME = "parallel_sum__ssm_conv_h3__dense_activation_gelu__prompt"
WS_HS, WS_W2S, WS_UR, WS_YT, WS_ST = 0, 0x600000, 0x800000, 0xB00000, 0xE00000
WS_SIZE = 0xE04000

def f2u(x):
    return struct.unpack("<I", struct.pack("<f", x))[0]

class E:
    def __init__(self):
        self.l = []
    def __call__(self, s, *a):
        for ln in s.strip("\n").split("\n"):
            ln = ln.strip()
            if ln:
                self.l.append(("" if ln.endswith(":") else "  ") + ln)
    def text(self):
        return "\n".join(self.l) + "\n"

def vr(a, n=1):
    return f"v{a}" if n == 1 else f"v[{a}:{a+n-1}]"
def sr(a, n=1):
    return f"s{a}" if n == 1 else f"s[{a}:{a+n-1}]"

def srd(e, s, karg, nbytes):
    e(f"s_load_dwordx2 {sr(s,2)}, s[0:1], {karg}")
    return [f"s_mov_b32 s{s+2}, {hex(nbytes)}", f"s_mov_b32 s{s+3}, 0x00020000"]

def kernel_head(e, label):
    e(f".globl {label}\n.p2align 8\n.type {label},@function\n{label}:")

def kernel_desc(label, vgpr, sgpr=102):
    acc = (vgpr + 3) // 4 * 4
    return f""".amdhsa_kernel {label}
  .amdhsa_next_free_vgpr {vgpr}
  .amdhsa_next_free_sgpr {sgpr}
  .amdhsa_accum_offset {acc}
  .amdhsa_group_segment_fixed_size 0
  .amdhsa_kernarg_size 112
  .amdhsa_user_sgpr_count 2
  .amdhsa_user_sgpr_kernarg_segment_ptr 1
  .amdhsa_system_sgpr_workgroup_id_x 1
.end_amdhsa_kernel
"""
```

```python
from common import *

LDS_CS, LDS_B1, LDS_ST, LDS_W2 = 131072, 131840, 132608, 133120
K1_LDS = 141312

def gen_k1(e, label):
    sQ, sW1, sK, sV, sSH, sB1, sW2, sWS = 20, 24, 28, 32, 36, 40, 44, 48
    sW, sWT, sWF, sRB, sCT, sM, sT0 = 52, 53, 54, 55, 56, 57, 58
    sX, sWA, sWB, sONE, sTMP = 60, 61, 62, 63, 64
    vX0, vX1, vW = 4, 5, 6
    vL = 1
    XA, WA, XB, WB = 8, 12, 24, 28
    vSUM, vSQ, vCS = 40, 41, 42
    ACC = 64
    FR = [112, 128]
    kernel_head(e, label)
    e("s_cmp_ge_u32 s2, 256\ns_cbranch_scc1 K1_END")
    post = []
    post += srd(e, sQ, 0, 2621440)
    post += srd(e, sW1, 56, 1966080)
    post += srd(e, sW2, 72, 1966080)
    post += srd(e, sK, 8, 2621440)
    post += srd(e, sV, 16, 2621440)
    post += srd(e, sSH, 24, 5120)
    post += srd(e, sB1, 64, 3072)
    post += srd(e, sWS, 104, WS_SIZE)
    for p in post: e(p)
    e(f"""
    v_lshrrev_b32 v2, 6, v0
    v_and_b32 v{vL}, 63, v0
    s_and_b32 s3, s2, 7
    v_readfirstlane_b32 s{sW}, v2
    s_lshr_b32 s4, s2, 3
    s_and_b32 s5, s3, 3
    s_lshl_b32 s5, s5, 3
    s_and_b32 s6, s4, 7
    s_add_u32 s{sRB}, s5, s6
    s_lshr_b32 s5, s3, 2
    s_lshl_b32 s5, s5, 2
    s_lshr_b32 s6, s4, 3
    s_add_u32 s{sCT}, s5, s6
    s_and_b32 s{sWT}, s{sW}, 1
    s_lshr_b32 s{sWF}, s{sW}, 1
    s_lshl_b32 s{sM}, s{sW}, 11
    s_lshl_b32 s{sT0}, s{sRB}, 6
    s_mov_b32 s{sONE}, 0x3f803f80
    """)
    e(f"""
    v_lshrrev_b32 v2, 3, v{vL}
    v_and_b32 v3, 7, v{vL}
    v_lshrrev_b32 v7, 4, v{vL}
    s_lshl_b32 s5, s{sW}, 4
    s_add_u32 s6, s5, s{sT0}
    v_add_u32 v60, s6, v2
    v_mul_u32_u24 v60, 1280, v60
    v_xor_b32 v61, v3, v7
    v_lshl_add_u32 v{vX0}, v61, 4, v60
    v_xor_b32 v61, 4, v61
    v_lshl_add_u32 v{vX1}, v61, 4, v60
    v_add_u32 v{vX1}, 10240, v{vX1}
    v_add_u32 v60, s5, v2
    v_mul_u32_u24 v60, 3072, v60
    v_and_b32 v61, 1, v7
    v_lshlrev_b32 v61, 2, v61
    v_xor_b32 v61, v3, v61
    v_lshl_add_u32 v{vW}, v61, 4, v60
    s_mul_i32 s5, s{sCT}, 384
    v_add_u32 v{vW}, s5, v{vW}
    """)
    def dma_list(st):
        slot = st & 3
        out = []
        for hh in range(2):
            out.append((slot*32768 + hh*1024, f"buffer_load_dwordx4 v{vX0+hh}, {sr(sQ,4)}, s{sX} offen lds"))
        for hh in range(2):
            for ln in range(3):
                out.append((slot*32768 + 8192 + ln*8192 + hh*1024 - ln*128,
                            f"buffer_load_dwordx4 v{vW}, {sr(sW1,4)}, s{sWA+hh} offen offset:{ln*128} lds"))
        return out
    def dma_soff(st):
        e(f"s_mov_b32 s{sX}, {st*128}\ns_mov_b32 s{sWA}, {st*196608}\ns_mov_b32 s{sWB}, {st*196608+24576}")
    e("s_waitcnt lgkmcnt(0)")
    for st in range(3):
        dma_soff(st)
        for m0, ins in dma_list(st):
            e(f"s_add_u32 m0, s{sM}, {m0}\ns_nop 0\n{ins}")
    e(f"""
    s_lshl_b32 s5, s2, 2
    s_add_u32 s5, s5, s{sW}
    s_min_u32 s5, s5, 959
    s_mul_i32 s6, s5, 3277
    s_lshr_b32 s6, s6, 16
    s_mul_i32 s7, s6, 20
    s_sub_u32 s7, s5, s7
    v_lshrrev_b32 v60, 2, v{vL}
    v_and_b32 v61, 3, v{vL}
    v_mul_u32_u24 v60, 1280, v60
    v_lshl_add_u32 v60, v61, 4, v60
    s_mul_i32 s8, s6, 40960
    s_lshl_b32 s9, s7, 6
    s_add_u32 s8, s8, s9
    s_add_u32 s9, s8, 20480
    s_add_u32 m0, s{sM}, {LDS_W2}
    s_nop 0
    buffer_load_dwordx4 v60, {sr(sW2,4)}, s8 offen lds
    s_add_u32 m0, s{sM}, {LDS_W2+1024}
    s_nop 0
    buffer_load_dwordx4 v60, {sr(sW2,4)}, s9 offen lds
    """)
    vB1 = 62
    e(f"""
    s_mul_i32 s8, s{sCT}, 384
    v_lshl_add_u32 v61, v0, 1, s8
    buffer_load_ushort v{vB1}, v61, {sr(sB1,4)}, 0 offen
    """)
    KR, VR_, SH = 144, 164, 180
    e(f"""
    s_lshr_b32 s10, s2, 3
    s_lshl_b32 s10, s10, 6
    s_lshl_b32 s11, s{sW}, 4
    s_add_u32 s10, s10, s11
    s_and_b32 s11, s2, 7
    s_mul_i32 s11, s11, 80
    s_mul_i32 s12, s10, 1280
    s_lshl_b32 s13, s11, 1
    s_add_u32 s12, s12, s13
    v_lshl_add_u32 v60, v{vL}, 2, s12
    v_add_u32 v61, -3840, v60
    v_add_u32 v2, -2560, v60
    v_add_u32 v3, -1280, v60
    s_mov_b32 s13, 5120
    s_mov_b32 s14, 10240
    s_mov_b32 s15, 15360
    s_lshl_b32 s16, s11, 3
    v_lshl_add_u32 v7, v{vL}, 4, s16
    s_mov_b32 exec_lo, -1
    s_mov_b32 exec_hi, 0xff
    buffer_load_dwordx4 {vr(SH,4)}, v7, {sr(sSH,4)}, 0 offen
    buffer_load_dword v{KR}, v61, {sr(sK,4)}, 0 offen
    buffer_load_dword v{KR+1}, v2, {sr(sK,4)}, 0 offen
    buffer_load_dword v{KR+2}, v3, {sr(sK,4)}, 0 offen
    """)
    so = ["0", "s13", "s14", "s15"]
    for i in range(16):
        e(f"buffer_load_dword v{KR+3+i}, v60, {sr(sK,4)}, {so[i>>2]} offen offset:{(i&3)*1280}")
    for i in range(16):
        e(f"buffer_load_dword v{VR_+i}, v60, {sr(sV,4)}, {so[i>>2]} offen offset:{(i&3)*1280}")
    e("s_mov_b64 exec, -1")
    e(f"""
    v_and_b32 v2, 31, v{vL}
    v_lshrrev_b32 v3, 5, v{vL}
    s_lshl_b32 s16, s{sWT}, 5
    v_add_u32 v7, s16, v2
    v_lshlrev_b32 v7, 7, v7
    v_bfe_u32 v46, v2, 1, 3
    v_xor_b32 v46, v46, v3
    """)
    for i in range(4):
        e(f"""
        s_xor_b32 s16, s{sW}, {i}
        s_lshl_b32 s16, s16, 1
        v_xor_b32 v47, s16, v46
        v_lshl_add_u32 v{XA+i}, v47, 4, v7
        v_add_u32 v{XB+i}, 0x10000, v{XA+i}
        """)
    e(f"""
    v_bfe_u32 v46, v{vL}, 2, 2
    v_and_b32 v47, 3, v{vL}
    v_lshlrev_b32 v47, 3, v47
    v_lshl_add_u32 v47, v46, 7, v47
    v_lshl_add_u32 v47, v3, 10, v47
    v_bfe_u32 v48, v{vL}, 4, 1
    v_lshl_add_u32 v47, v48, 5, v47
    v_lshrrev_b32 v46, 1, v46
    """)
    for j in range(3):
        e(f"""
        s_mul_i32 s16, s{sWF}, 3
        s_add_u32 s16, s16, {j}
        s_and_b32 s17, s16, 1
        s_lshr_b32 s16, s16, 1
        s_lshl_b32 s16, s16, 13
        s_add_u32 s16, s16, 8192
        v_xor_b32 v48, s17, v46
        v_lshl_add_u32 v48, v48, 6, v47
        """)
        for i in range(4):
            e(f"""
            s_xor_b32 s17, s{sW}, {i}
            s_lshl_b32 s17, s17, 11
            s_add_u32 s17, s17, s16
            v_add_u32 v{WA+4*j+i}, s17, v48
            v_add_u32 v{WB+4*j+i}, 0x10000, v{WA+4*j+i}
            """)
    for r in range(40, 45): e(f"v_mov_b32 v{r}, 0")
    e(f"""
    v_lshrrev_b32 v46, 5, v{vL}
    v_bfe_u32 v47, v{vL}, 4, 1
    v_lshlrev_b32 v46, 4, v46
    v_lshl_add_u32 v46, v47, 2, v46
    v_bfe_u32 v47, v{vL}, 2, 2
    v_add_u32 v46, v46, v47
    v_and_b32 v47, 3, v{vL}
    v_lshlrev_b32 v47, 3, v47
    v_lshl_add_u32 v46, v46, 6, v47
    s_add_u32 s16, s{sM}, {LDS_W2}
    v_add_u32 v46, s16, v46
    s_lshl_b32 s7, s7, 1
    s_mul_i32 s8, s7, 52429
    s_lshr_b32 s8, s8, 18
    s_mul_i32 s9, s8, 5
    s_sub_u32 s9, s7, s9
    s_mul_i32 s8, s8, 48
    s_add_u32 s8, s8, s6
    s_mul_i32 s8, s8, 5
    s_add_u32 s8, s8, s9
    s_lshl_b32 s8, s8, 10
    s_add_u32 s8, s8, {WS_W2S}
    s_add_u32 s7, s7, 1
    s_mul_i32 s9, s7, 52429
    s_lshr_b32 s9, s9, 18
    s_mul_i32 s16, s9, 5
    s_sub_u32 s16, s7, s16
    s_mul_i32 s9, s9, 48
    s_add_u32 s9, s9, s6
    s_mul_i32 s9, s9, 5
    s_add_u32 s9, s9, s16
    s_lshl_b32 s9, s9, 10
    s_add_u32 s9, s9, {WS_W2S}
    v_lshlrev_b32 v47, 4, v{vL}
    s_waitcnt vmcnt(37)
    ds_read_b64_tr_b16 v[48:49], v46
    ds_read_b64_tr_b16 v[50:51], v46 offset:512
    ds_read_b64_tr_b16 v[52:53], v46 offset:32
    ds_read_b64_tr_b16 v[54:55], v46 offset:544
    s_waitcnt lgkmcnt(2)
    buffer_store_dwordx4 v[48:51], v47, {sr(sWS,4)}, s8 offen
    s_waitcnt lgkmcnt(0)
    buffer_store_dwordx4 v[52:55], v47, {sr(sWS,4)}, s9 offen
    """)
    e(f"""
    s_waitcnt vmcnt(38)
    v_lshlrev_b32 v{vB1}, 16, v{vB1}
    v_lshlrev_b32 v46, 2, v0
    v_mov_b32 v47, 0
    v_cmp_gt_u32 vcc, 192, v0
    s_and_saveexec_b64 s[16:17], vcc
    """)
    e(f"""
    v_add_u32 v48, {LDS_CS}, v46
    ds_write_b32 v48, v47
    ds_write_b32 v48, v{vB1} offset:{LDS_B1-LDS_CS}
    s_mov_b64 exec, s[16:17]
    v_cmp_gt_u32 vcc, 128, v0
    s_and_saveexec_b64 s[16:17], vcc
    v_add_u32 v48, {LDS_ST}, v46
    ds_write_b32 v48, v47
    s_mov_b64 exec, s[16:17]
    """)
    KF, VF, SF, U = 184, 222, 46, 112
    e("s_mov_b32 s16, 0xffff0000\ns_waitcnt vmcnt(2)")
    for tau in range(4):
        for c in range(2):
            src = SH + 2*c + (tau >> 1)
            if tau & 1: e(f"v_and_b32 v{SF+2*tau+c}, s16, v{src}")
            else: e(f"v_lshlrev_b32 v{SF+2*tau+c}, 16, v{src}")
    for i in range(19):
        e(f"v_lshlrev_b32 v{KF+2*i}, 16, v{KR+i}\nv_and_b32 v{KF+2*i+1}, s16, v{KR+i}")
    for s in range(16):
        e(f"v_lshlrev_b32 v{VF}, 16, v{VR_+s}\nv_and_b32 v{VF+1}, s16, v{VR_+s}")
        e(f"v_pk_mul_f32 {vr(U+2*s,2)}, {vr(KF+2*(s+3),2)}, {vr(SF,2)}")
        for tau in range(1, 4):
            e(f"v_pk_fma_f32 {vr(U+2*s,2)}, {vr(KF+2*(s+3-tau),2)}, {vr(SF+2*tau,2)}, {vr(U+2*s,2)}")
        e(f"v_pk_mul_f32 {vr(U+2*s,2)}, {vr(U+2*s,2)}, {vr(VF,2)}")
    OUT = 144
    for c in range(2):
        for j in range(8):
            e(f"v_cvt_pk_bf16_f32 v{OUT+8*c+j}, v{U+2*(15-2*j)+c}, v{U+2*(14-2*j)+c}")
    e(f"""
    s_sub_u32 s16, 2032, s10
    s_lshl_b32 s16, s16, 1
    s_lshl_b32 s17, s11, 12
    s_add_u32 s16, s16, s17
    s_add_u32 s16, s16, {WS_UR}
    v_lshlrev_b32 v46, 13, v{vL}
    v_add_u32 v47, 4096, v46
    s_mov_b32 exec_lo, -1
    s_mov_b32 exec_hi, 0xff
    buffer_store_dwordx4 {vr(OUT,4)}, v46, {sr(sWS,4)}, s16 offen
    buffer_store_dwordx4 {vr(OUT+4,4)}, v46, {sr(sWS,4)}, s16 offen offset:16
    buffer_store_dwordx4 {vr(OUT+8,4)}, v47, {sr(sWS,4)}, s16 offen
    buffer_store_dwordx4 {vr(OUT+12,4)}, v47, {sr(sWS,4)}, s16 offen offset:16
    s_mov_b64 exec, -1
    """)
    def reads(st, i, fs):
        slot = st & 3
        xa, wa = (XA, WA) if slot < 2 else (XB, WB)
        base = (slot & 1) * 32768
        f = FR[fs]
        out = [f"ds_read_b128 {vr(f,4)}, v{xa+i} offset:{base}"]
        for j in range(3):
            for h4 in range(2):
                out.append(f"ds_read_b64_tr_b16 {vr(f+4+4*j+2*h4,2)}, v{wa+4*j+i} offset:{base+h4*512}")
        return out
    e("s_waitcnt lgkmcnt(0)\ns_barrier")
    for r in reads(0, 0, 0): e(r)
    NST = 10
    for st in range(NST):
        if st + 1 < NST:
            e(f"s_waitcnt vmcnt({8 if st + 2 < NST else 0})")
        if 0 < st < NST - 1: e("s_barrier")
        dl = []
        if st + 3 < NST:
            dma_soff(st + 3)
            dl = dma_list(st + 3)
        for i in range(4):
            fs = i & 1
            last = (st == NST - 1 and i == 3)
            if not last:
                nst, ni = (st, i + 1) if i < 3 else (st + 1, 0)
                for r in reads(nst, ni, fs ^ 1): e(r)
                e("s_waitcnt lgkmcnt(7)")
            else:
                e("s_waitcnt lgkmcnt(0)")
            f = FR[fs]
            dots = []
            st_d, cs_d = [], []
            if i in (0, 1):
                for q in range(4):
                    st_d.append(f"v_dot2_f32_bf16 v{vSUM}, v{f+q}, s{sONE}, v{vSUM}")
                    st_d.append(f"v_dot2_f32_bf16 v{vSQ}, v{f+q}, v{f+q}, v{vSQ}")
            if i in (0, 2):
                for q in range(4):
                    for j in range(3):
                        cs_d.append(f"v_dot2_f32_bf16 v{vCS+j}, v{f+4+4*j+q}, s{sONE}, v{vCS+j}")
            dots = st_d + cs_d
            d2 = dl[2*i:2*i+2]
            nd = len(dots)
            chunks = [dots[(nd*j)//3:(nd*(j+1))//3] for j in range(3)]
            for j in range(3):
                cin = "0" if (st == 0 and i == 0) else vr(ACC+16*j,16)
                e(f"v_mfma_f32_32x32x16_bf16 {vr(ACC+16*j,16)}, {vr(f+4+4*j,4)}, {vr(f,4)}, {cin}")
                ch = list(chunks[j])
                if j < len(d2):
                    m0, ins = d2[j]
                    e(f"s_add_u32 m0, s{sM}, {m0}")
                    if ch: e(ch.pop(0))
                    else: e("s_nop 0")
                    e(ins)
                for c in ch: e(c)
    e("s_nop 4")
    for r in range(40, 45):
        e(f"v_mov_b32 v{r+6}, v{r}")
    e("s_nop 1")
    for r in range(40, 45):
        e(f"v_permlane32_swap_b32 v{r}, v{r+6}")
    e("s_nop 1")
    for r in range(40, 45):
        e(f"v_add_f32 v{r}, v{r}, v{r+6}")
    e(f"""
    v_and_b32 v2, 31, v{vL}
    v_lshrrev_b32 v3, 5, v{vL}
    s_lshl_b32 s16, s{sWT}, 8
    s_add_u32 s16, s16, {LDS_ST}
    v_lshl_add_u32 v46, v2, 3, s16
    s_mul_i32 s17, s{sWF}, 384
    s_add_u32 s17, s17, {LDS_CS}
    v_lshl_add_u32 v47, v2, 2, s17
    s_mov_b32 exec_hi, 0
    ds_add_f32 v46, v{vSUM}
    ds_add_f32 v46, v{vSQ} offset:4
    ds_add_f32 v47, v{vCS}
    ds_add_f32 v47, v{vCS+1} offset:128
    ds_add_f32 v47, v{vCS+2} offset:256
    s_mov_b64 exec, -1
    v_lshl_add_u32 v47, v3, 4, s17
    s_waitcnt lgkmcnt(0)
    s_barrier
    ds_read_b64 v[48:49], v46
    """)
    CSR, B1R = 112, 160
    for j in range(3):
        for a in range(4):
            e(f"ds_read_b128 {vr(CSR+16*j+4*a,4)}, v47 offset:{128*j+32*a}")
    e("s_waitcnt lgkmcnt(12)")
    inv640 = hex(f2u(1.0/640))
    e(f"""
    v_mul_f32 v48, {inv640}, v48
    v_mul_f32 v49, {inv640}, v49
    v_fma_f32 v49, -v48, v48, v49
    v_max_f32 v49, 0, v49
    v_cvt_pk_bf16_f32 v50, v48, v49
    v_and_b32 v51, 0xffff0000, v50
    v_lshlrev_b32 v50, 16, v50
    v_add_f32 v51, {hex(f2u(1e-5))}, v51
    v_cvt_pk_bf16_f32 v51, v51, v51
    v_lshlrev_b32 v51, 16, v51
    v_sqrt_f32 v51, v51
    s_nop 0
    v_cvt_pk_bf16_f32 v51, v51, v51
    v_lshlrev_b32 v51, 16, v51
    v_rcp_f32 v51, v51
    s_waitcnt lgkmcnt(0)
    """)
    for j in range(3):
        for a in range(4):
            e(f"ds_read_b128 {vr(B1R+16*j+4*a,4)}, v47 offset:{LDS_B1-LDS_CS+128*j+32*a}")
    e(f"""
    s_or_b32 s16, s{sCT}, s{sWF}
    s_cmp_lg_u32 s16, 0
    s_cbranch_scc1 K1_NOST
    s_lshl_b32 s16, s{sWT}, 5
    s_add_u32 s16, s16, s{sT0}
    s_lshl_b32 s16, s16, 3
    s_add_u32 s16, s16, {WS_ST}
    v_lshlrev_b32 v46, 3, v2
    s_mov_b32 exec_hi, 0
    buffer_store_dwordx2 v[50:51], v46, {sr(sWS,4)}, s16 offen
    s_mov_b64 exec, -1
    K1_NOST:
    """)
    e(f"""
    s_mul_i32 s16, s{sRB}, 48
    s_mul_i32 s17, s{sCT}, 6
    s_add_u32 s16, s16, s17
    s_mul_i32 s17, s{sWF}, 3
    s_add_u32 s16, s16, s17
    s_lshl_b32 s16, s16, 2
    s_lshl_b32 s17, s{sWT}, 1
    s_add_u32 s16, s16, s17
    s_lshl_b32 s16, s16, 10
    v_bfe_u32 v46, v{vL}, 4, 1
    v_lshlrev_b32 v46, 10, v46
    v_and_b32 v47, 15, v{vL}
    v_lshl_add_u32 v47, v3, 4, v47
    v_lshl_add_u32 v46, v47, 4, v46
    s_add_u32 s17, s16, 4096
    s_add_u32 s18, s16, 8192
    s_mov_b32 s4, {hex(f2u(-2.302208198))}
    s_mov_b32 s6, {hex(f2u(-0.1029432397))}
    v_mov_b32 v52, s4
    v_mov_b32 v53, s4
    s_mov_b32 s7, s6
    s_waitcnt lgkmcnt(0)
    """)
    T = 208
    for j in range(3):
        for p in range(2):
            for m in range(4):
                r = ACC + 16*j + 8*p + 2*m
                c = CSR + 16*j + 8*p + 2*m
                b = B1R + 16*j + 8*p + 2*m
                t = T + 8*(m & 1)
                e(f"""
                v_pk_fma_f32 {vr(r,2)}, {vr(c,2)}, v[50:51], {vr(r,2)} op_sel:[0,0,0] op_sel_hi:[1,0,1] neg_lo:[1,0,0] neg_hi:[1,0,0]
                v_pk_fma_f32 {vr(r,2)}, {vr(r,2)}, v[50:51], {vr(b,2)} op_sel:[0,1,0] op_sel_hi:[1,1,1]
                v_pk_mul_f32 {vr(t,2)}, {vr(r,2)}, {vr(r,2)}
                v_pk_fma_f32 {vr(t,2)}, {vr(t,2)}, s[6:7], v[52:53]
                v_pk_mul_f32 {vr(t,2)}, {vr(t,2)}, {vr(r,2)}
                v_exp_f32 v{t}, v{t}
                v_exp_f32 v{t+1}, v{t+1}
                s_nop 0
                v_pk_add_f32 {vr(t,2)}, {vr(t,2)}, 1.0 op_sel_hi:[1,0]
                v_rcp_f32 v{t}, v{t}
                v_rcp_f32 v{t+1}, v{t+1}
                s_nop 0
                v_pk_mul_f32 {vr(t,2)}, {vr(t,2)}, {vr(r,2)}
                v_cvt_pk_bf16_f32 v{224+8*((2*j+p)&1)+m}, v{t}, v{t+1}
                """)
            o = 224 + 8*((2*j+p) & 1)
            e(f"buffer_store_dwordx4 {vr(o,4)}, v46, {sr(sWS,4)}, s{16+j} offen offset:{512*p}")
    e("K1_END:\ns_endpgm")
```

```python
from common import *

CONV_SZ = 21760
L_CONV = 0
L_RED = 4 * CONV_SZ
L_Q = L_RED + 61440
L_FLAG = L_Q + 4 * 3072
K2_LDS = L_FLAG + 64

def gemm_part(e, o):
    sHS, sW2S, sQ, sOUT, sY, sB2, sDBG = 20, 24, 28, 32, 36, 40, 44
    sW, sRB, sCT, sHO, sWO, sT = 52, 55, 56, 57, 58, 59
    vL = 1
    HS, W2A, W2B, QO, ST, B2, YO, POLL = 2, 6, 7, 8, 12, 14, 24, 25
    BUF, ACC = 32, 176
    POLLSTEP = int(o.get("poll", 8))
    CHK = int(o.get("chk", 10))
    CAP = int(o.get("cap", 1 << 22))
    post = []
    post += srd(e, sHS, 104, WS_SIZE)
    post += srd(e, sQ, 0, 2621440)
    post += srd(e, sB2, 80, 1280)
    post += srd(e, sOUT, 88, 2621440)
    post += srd(e, sDBG, 96, 256)
    for p in post: e(p)
    e(f"""
    s_and_b32 s3, s2, 7
    s_lshr_b32 s4, s2, 3
    s_and_b32 s5, s3, 3
    s_lshl_b32 s5, s5, 3
    s_and_b32 s6, s4, 7
    s_add_u32 s{sRB}, s5, s6
    s_lshr_b32 s5, s3, 2
    s_lshl_b32 s5, s5, 2
    s_lshr_b32 s6, s4, 3
    s_add_u32 s{sCT}, s5, s6
    s_mul_i32 s5, s{sRB}, 48
    s_mul_i32 s6, s{sW}, 12
    s_add_u32 s5, s5, s6
    s_lshl_b32 s{sHO}, s5, 12
    s_mul_i32 s5, s{sCT}, 48
    s_add_u32 s5, s5, s6
    s_mul_i32 s{sWO}, s5, 5120
    s_add_u32 s{sWO}, s{sWO}, {WS_W2S}
    v_lshlrev_b32 v{W2A}, 4, v{vL}
    v_add_u32 v{W2B}, 4096, v{W2A}
    """)
    for sg in range(4):
        e(f"""
        s_add_u32 s5, s{sW}, {sg}
        s_and_b32 s5, s5, 3
        s_lshl_b32 s5, s5, 10
        v_add_u32 v{HS+sg}, s5, v{W2A}
        """)
    def loads(step):
        b = BUF + 36 * (step & 3)
        for sg in range(4):
            e(f"buffer_load_dwordx4 {vr(b+4*sg,4)}, v{HS+sg}, {sr(sHS,4)}, s{sHO} offen")
        for j in range(5):
            if j < 4: e(f"buffer_load_dwordx4 {vr(b+16+4*j,4)}, v{W2A}, {sr(sHS,4)}, s{sWO} offen offset:{1024*j}")
            else: e(f"buffer_load_dwordx4 {vr(b+16+4*j,4)}, v{W2B}, {sr(sHS,4)}, s{sWO} offen")
        e(f"s_add_u32 s{sHO}, s{sHO}, 4096\ns_add_u32 s{sWO}, s{sWO}, 5120")
    e("s_waitcnt lgkmcnt(0)")
    loads(0); loads(1); loads(2)
    e(f"""
    s_lshl_b32 s{sT}, s{sRB}, 6
    s_lshl_b32 s5, s{sW}, 4
    s_add_u32 s{sT}, s{sT}, s5
    s_mul_i32 s6, s{sT}, 1280
    s_mul_i32 s7, s{sCT}, 160
    s_add_u32 s6, s6, s7
    s_mul_i32 s8, s{sW}, 3072
    s_add_u32 s8, s8, {L_Q}
    """)
    for it in range(3):
        e(f"""
        v_add_u32 v26, {64*it}, v{vL}
        v_mul_u32_u24 v27, 6554, v26
        v_lshrrev_b32 v27, 16, v27
        v_mul_u32_u24 v28, 10, v27
        v_sub_u32 v28, v26, v28
        v_mul_u32_u24 v27, 1280, v27
        v_lshl_add_u32 v27, v28, 4, v27
        v_add_u32 v{QO+it}, s6, v27
        """)
        if it == 2:
            e(f"""
            v_mov_b32 v27, 0x7ffffff0
            v_cmp_gt_u32 vcc, 32, v{vL}
            v_cndmask_b32 v{QO+2}, v27, v{QO+2}, vcc
            """)
        e(f"""
        s_add_u32 m0, s8, {1024*it}
        s_nop 0
        buffer_load_dwordx4 v{QO+it}, {sr(sQ,4)}, 0 offen lds
        """)
    e(f"""
    v_and_b32 v26, 15, v{vL}
    v_lshrrev_b32 v27, 4, v{vL}
    s_lshl_b32 s6, s{sT}, 3
    s_add_u32 s9, s6, {WS_ST}
    v_lshlrev_b32 v28, 3, v26
    buffer_load_dwordx2 {vr(ST,2)}, v28, {sr(sHS,4)}, s9 offen
    v_lshl_add_u32 v{YO}, v27, 14, v28
    s_mul_i32 s7, s{sCT}, {20*16384}
    s_add_u32 s6, s6, s7
    s_add_u32 s10, s6, {WS_YT}
    v_lshlrev_b32 v29, 3, v27
    s_mul_i32 s7, s{sCT}, 160
    """)
    for j in range(5):
        e(f"buffer_load_dwordx2 {vr(B2+2*j,2)}, v29, {sr(sB2,4)}, s7 offen offset:{32*j}")
    e(f"""
    s_lshl_b32 s11, s{sCT}, 5
    v_mov_b32 v30, 0
    s_barrier
    """)
    YB = BUF
    NX = 9
    def poll_issue():
        e(f"buffer_load_dword v{POLL}, v30, {sr(sDBG,4)}, s11 offen sc1")
    def poll_check_and_y(n_after):
        e(f"""
        s_waitcnt vmcnt({n_after})
        s_mov_b32 s13, 0
        K2_POLL:
        v_readfirstlane_b32 s5, v{POLL}
        s_cmp_ge_u32 s5, 80
        s_cbranch_scc1 K2_POLLOK
        s_add_u32 s13, s13, 1
        s_cmp_ge_u32 s13, {CAP}
        s_cbranch_scc1 K2_POLLOK
        buffer_load_dword v{POLL}, v30, {sr(sDBG,4)}, s11 offen sc1
        s_waitcnt vmcnt(0)
        s_branch K2_POLL
        K2_POLLOK:
        """)
        for j in range(5):
            e(f"s_add_u32 s12, s10, {65536*j}")
            e(f"buffer_load_dwordx2 {vr(YB+2*j,2)}, v{YO}, {sr(sHS,4)}, s12 offen sc1")
    q = ["L0"]*9 + ["L1"]*9 + ["L2"]*9 + ["X"]*NX
    def wait_for(tag):
        last = max(i for i, x in enumerate(q) if x == tag)
        n = len(q) - 1 - last
        return n
    assert POLLSTEP <= CHK and CHK >= 8
    for step in range(12):
        if step == POLLSTEP:
            poll_issue(); q.append("P")
        if step + 3 < 12:
            loads(step + 3); q += [f"L{step+3}"]*9
        e(f"s_waitcnt vmcnt({min(63, wait_for(f'L{step}'))})")
        b = BUF + 36 * (step & 3)
        for j in range(5):
            for sg in range(4):
                a = ACC + 20*sg + 4*j
                cin = "0" if step == 0 else vr(a,4)
                e(f"v_mfma_f32_16x16x32_bf16 {vr(a,4)}, {vr(b+16+4*j,4)}, {vr(b+4*sg,4)}, {cin}")
        if step == CHK:
            poll_check_and_y(wait_for("P")); q += ["Y"]*5
    e(f"""
    v_lshlrev_b32 v26, 4, v{vL}
    """)
    for sg in range(1, 4):
        e(f"""
        s_add_u32 s5, s{sW}, {sg}
        s_and_b32 s5, s5, 3
        s_mul_i32 s5, s5, 15360
        s_add_u32 s5, s5, {L_RED + (sg-1)*5120}
        v_add_u32 v{26+sg}, s5, v26
        """)
    e("s_nop 7")
    for sg in range(1, 4):
        for j in range(5):
            e(f"ds_write_b128 v{26+sg}, {vr(ACC+20*sg+4*j,4)} offset:{1024*j}")
    e(f"""
    s_mul_i32 s5, s{sW}, 15360
    s_add_u32 s5, s5, {L_RED}
    v_add_u32 v26, s5, v26
    s_waitcnt lgkmcnt(0)
    s_barrier
    """)
    fb = [BUF + 36*b for b in range(1, 4)]
    RR = [fb[sidx // 5] + 4*(sidx % 5) for sidx in range(15)]
    for sidx in range(15):
        e(f"ds_read_b128 {vr(RR[sidx],4)}, v26 offset:{1024*sidx}")
    QV = YB + 12
    e(f"""
    v_and_b32 v27, 15, v{vL}
    v_lshrrev_b32 v28, 4, v{vL}
    v_mul_u32_u24 v27, 160, v27
    v_lshl_add_u32 v27, v28, 3, v27
    v_add_u32 v27, s8, v27
    s_waitcnt lgkmcnt(10)
    """)
    for sidx in range(15):
        j = sidx % 5
        if sidx == 5:
            e("s_waitcnt lgkmcnt(5)")
            for jj in range(5):
                e(f"ds_read_b64 {vr(QV+2*jj,2)}, v27 offset:{32*jj}")
            e("s_waitcnt lgkmcnt(10)")
        if sidx == 10: e("s_waitcnt lgkmcnt(5)")
        for h in range(2):
            e(f"v_pk_add_f32 {vr(ACC+4*j+2*h,2)}, {vr(ACC+4*j+2*h,2)}, {vr(RR[sidx]+2*h,2)}")
    e("s_mov_b32 s5, 0xffff0000\ns_waitcnt vmcnt(0) lgkmcnt(0)")
    T = fb[0]
    for j in range(5):
        for h in range(2):
            a = ACC + 4*j + 2*h
            t = T + 12*((2*j+h) & 1)
            qd, yd, bd = QV+2*j+h, YB+2*j+h, B2+2*j+h
            e(f"""
            v_lshlrev_b32 v{t}, 16, v{qd}
            v_and_b32 v{t+1}, s5, v{qd}
            v_lshlrev_b32 v{t+2}, 16, v{yd}
            v_and_b32 v{t+3}, s5, v{yd}
            v_lshlrev_b32 v{t+4}, 16, v{bd}
            v_and_b32 v{t+5}, s5, v{bd}
            v_pk_add_f32 {vr(t+6,2)}, {vr(t,2)}, {vr(ST,2)} op_sel_hi:[1,0] neg_lo:[0,1] neg_hi:[0,1]
            v_pk_add_f32 {vr(a,2)}, {vr(a,2)}, {vr(t+4,2)}
            v_pk_mul_f32 {vr(t+6,2)}, {vr(t+6,2)}, {vr(ST,2)} op_sel:[0,1] op_sel_hi:[1,1]
            v_pk_add_f32 {vr(a,2)}, {vr(a,2)}, {vr(t,2)}
            v_pk_fma_f32 {vr(a,2)}, {vr(t+6,2)}, {vr(t+2,2)}, {vr(a,2)}
            v_cvt_pk_bf16_f32 v{qd}, v{a}, v{a+1}
            """)
        e(f"ds_write_b64 v27, {vr(QV+2*j,2)} offset:{32*j}")
    e(f"""
    v_lshlrev_b32 v26, 4, v{vL}
    v_add_u32 v26, s8, v26
    s_waitcnt lgkmcnt(0)
    ds_read_b128 {vr(T,4)}, v26
    ds_read_b128 {vr(T+4,4)}, v26 offset:1024
    ds_read_b128 {vr(T+8,4)}, v26 offset:2048
    s_waitcnt lgkmcnt(2)
    buffer_store_dwordx4 {vr(T,4)}, v{QO}, {sr(sOUT,4)}, 0 offen
    s_waitcnt lgkmcnt(1)
    buffer_store_dwordx4 {vr(T+4,4)}, v{QO+1}, {sr(sOUT,4)}, 0 offen
    s_waitcnt lgkmcnt(0)
    buffer_store_dwordx4 {vr(T+8,4)}, v{QO+2}, {sr(sOUT,4)}, 0 offen
    s_endpgm
    """)

def conv_part(e, o):
    sKK, sUR, sD, sWS, sDBG = 20, 24, 28, 32, 36
    sW, sCW, sCH, sLB = 52, 53, 54, 55
    vL = 1
    A, B, ACC = [64, 96], [128, 160], 192
    AA, BA = 2, 3
    e(f"""
    s_cmp_ge_u32 s2, 160
    s_cbranch_scc1 K2_END
    s_load_dwordx2 s[4:5], s[0:1], 32
    s_load_dwordx2 s[6:7], s[0:1], 104
    s_load_dwordx2 {sr(sD,2)}, s[0:1], 40
    s_load_dwordx2 {sr(sWS,2)}, s[0:1], 104
    s_load_dwordx2 {sr(sDBG,2)}, s[0:1], 96
    s_setprio {int(o.get('prio', 3))}
    s_sub_u32 s{sCW}, s{sW}, 4
    s_lshl_b32 s{sCH}, s2, 2
    s_add_u32 s{sCH}, s{sCH}, s{sCW}
    s_mul_i32 s{sLB}, s{sCW}, {CONV_SZ}
    s_mov_b32 s{sKK+2}, 4096
    s_mov_b32 s{sKK+3}, 0x00020000
    s_mov_b32 s{sUR+2}, 4096
    s_mov_b32 s{sUR+3}, 0x00020000
    s_mov_b32 s{sD+2}, 1280
    s_mov_b32 s{sD+3}, 0x00020000
    s_mov_b32 s{sWS+2}, {hex(WS_SIZE)}
    s_mov_b32 s{sWS+3}, 0x00020000
    s_mov_b32 s{sDBG+2}, 256
    s_mov_b32 s{sDBG+3}, 0x00020000
    s_lshl_b32 s8, s{sCH}, 12
    s_add_u32 s9, s8, {WS_UR}
    v_lshlrev_b32 v4, 4, v{vL}
    v_add_u32 v5, -32, v4
    v_add_u32 v6, -16, v4
    s_lshl_b32 s10, s{sCW}, 2
    s_add_u32 s10, s10, {L_FLAG}
    v_mov_b32 v7, s10
    v_mov_b32 v8, 0
    ds_write_b32 v7, v8
    s_waitcnt lgkmcnt(0)
    s_add_u32 s{sKK}, s4, s8
    s_addc_u32 s{sKK+1}, s5, 0
    s_add_u32 s{sUR}, s6, s9
    s_addc_u32 s{sUR+1}, s7, 0
    """)
    KD = 64
    for it in range(5):
        if it == 0:
            e(f"buffer_load_dwordx4 {vr(KD,4)}, v5, {sr(sKK,4)}, 0 offen")
            e(f"buffer_load_dwordx2 {vr(KD+4,2)}, v6, {sr(sKK,4)}, 0 offen")
        else:
            e(f"v_add_u32 v9, {1024*it-32}, v4\nv_add_u32 v10, {1024*it-16}, v4")
            e(f"buffer_load_dwordx4 {vr(KD+8*it,4)}, v9, {sr(sKK,4)}, 0 offen")
            e(f"buffer_load_dwordx2 {vr(KD+8*it+4,2)}, v10, {sr(sKK,4)}, 0 offen")
    for it in range(5):
        e(f"s_add_u32 m0, s{sLB}, {1024*it}\ns_mov_b32 s11, {1024*it}")
        e(f"buffer_load_dwordx4 v4, {sr(sUR,4)}, s11 offen lds")
    e(f"""
    s_lshl_b32 s11, s{sCH}, 1
    v_mov_b32 v9, s11
    buffer_load_ushort v11, v9, {sr(sD,4)}, 0 offen
    s_barrier
    v_add_u32 v12, s{sLB}, v4
    v_add_u32 v12, 5120, v12
    """)
    e(f"""
    v_and_b32 v13, 15, v{vL}
    v_lshrrev_b32 v14, 4, v{vL}
    v_add_u32 v15, 1, v13
    v_and_b32 v16, 3, v15
    v_mul_u32_u24 v16, 4160, v16
    v_lshrrev_b32 v15, 2, v15
    v_lshl_add_u32 v16, v15, 3, v16
    v_lshl_add_u32 v16, v14, 4, v16
    s_add_u32 s11, s{sLB}, 5120
    v_add_u32 v{AA}, s11, v16
    v_lshlrev_b32 v15, 5, v13
    v_lshlrev_b32 v16, 4, v14
    v_sub_u32 v16, v16, v15
    s_add_u32 s11, s{sLB}, {2*(2032-1792)}
    v_add_u32 v{BA}, s11, v16
    """)
    for it in range(5):
        d = KD + 8*it
        t = 112
        e(f"s_waitcnt vmcnt({6 + 2*(4-it)})")
        if it == 4: e("s_mov_b64 exec, 3")
        for k in range(4):
            e(f"v_alignbyte_b32 v{t+k}, v{d+k+1}, v{d+k}, 2")
        for k in range(4):
            e(f"v_alignbyte_b32 v{t+4+k}, v{d+k+2}, v{d+k+1}, 2")
        e(f"""
        ds_write_b128 v12, {vr(d,4)} offset:{1024*it}
        ds_write_b128 v12, {vr(t,4)} offset:{1024*it+4160}
        v_mov_b32 v{t+8}, v{d+1}
        v_mov_b32 v{t+9}, v{d+2}
        v_mov_b32 v{t+10}, v{d+3}
        v_mov_b32 v{t+11}, v{d+4}
        ds_write_b128 v12, {vr(t+4,4)} offset:{1024*it+3*4160}
        ds_write_b128 v12, {vr(t+8,4)} offset:{1024*it+2*4160}
        """)
        if it < 4: e("s_nop 1")
    e("s_mov_b64 exec, -1\ns_waitcnt vmcnt(0) lgkmcnt(0)")
    def rd(r0i, bs):
        out = []
        for m in range(8):
            out.append(f"ds_read_b128 {vr(B[bs]+4*m,4)}, v{BA} offset:{2*(1792-256*m)+64*r0i}")
        for dl in range(8):
            for h in range(2):
                out.append(f"ds_read_b64 {vr(A[bs]+4*dl+2*h,2)}, v{AA} offset:{512*dl+64*r0i+8*h}")
        return out
    for idx, r in enumerate(rd(0, 0)):
        e(r)
        if idx == 11: e("s_waitcnt lgkmcnt(4)")
    pairs = []
    rem = {n: list(range(n+1)) for n in range(8)}
    lastn = []
    while any(rem.values()):
        cand = sorted([n for n in rem if rem[n]], key=lambda n: (n in lastn[-2:], -len(rem[n])))
        n = cand[0]
        dl = rem[n].pop(0)
        pairs.append((n, dl)); lastn.append(n)
    for r0i in range(8):
        bs = r0i & 1
        nxt = rd(r0i + 1, bs ^ 1) if r0i < 7 else []
        e("s_waitcnt lgkmcnt(0)")
        seen = set()
        for idx, (n, dl) in enumerate(pairs):
            cin = "0" if (r0i == 0 and n not in seen) else vr(ACC+4*n,4)
            seen.add(n)
            e(f"v_mfma_f32_16x16x32_bf16 {vr(ACC+4*n,4)}, {vr(A[bs]+4*dl,4)}, {vr(B[bs]+4*(n-dl),4)}, {cin}")
            if idx < len(nxt): e(nxt[idx])
    e(f"""
    v_lshlrev_b32 v11, 16, v11
    v_lshlrev_b32 v15, 5, v13
    v_lshl_add_u32 v15, v14, 3, v15
    s_add_u32 s11, s{sLB}, {2*(2044-1792)}
    v_sub_u32 v16, s11, v15
    s_add_u32 s11, s{sLB}, 5120
    v_add_u32 v17, s11, v15
    s_mov_b32 s12, 0xffff0000
    """)
    U = 64
    for n in range(8):
        e(f"ds_read_b64 {vr(U+2*n,2)}, v16 offset:{2*(1792-256*n)}")
    e("s_waitcnt lgkmcnt(0)")
    for n in range(8):
        a = ACC + 4*n
        t = 96 + 8*(n & 1)
        e(f"""
        v_and_b32 v{t}, s12, v{U+2*n+1}
        v_lshlrev_b32 v{t+1}, 16, v{U+2*n+1}
        v_and_b32 v{t+2}, s12, v{U+2*n}
        v_lshlrev_b32 v{t+3}, 16, v{U+2*n}
        v_pk_fma_f32 {vr(a,2)}, {vr(t,2)}, v[10:11], {vr(a,2)} op_sel:[0,1,0] op_sel_hi:[1,1,1]
        v_pk_fma_f32 {vr(a+2,2)}, {vr(t+2,2)}, v[10:11], {vr(a+2,2)} op_sel:[0,1,0] op_sel_hi:[1,1,1]
        v_cvt_pk_bf16_f32 v{t+4}, v{a}, v{a+1}
        v_cvt_pk_bf16_f32 v{t+5}, v{a+2}, v{a+3}
        ds_write_b64 v17, {vr(t+4,2)} offset:{512*n}
        """)
    e(f"""
    v_mov_b32 v8, 1
    v_mov_b32 v9, {L_FLAG}
    s_waitcnt lgkmcnt(0)
    ds_write_b32 v7, v8
    s_mov_b32 s16, 0
    K2_SPIN:
    s_add_u32 s16, s16, 1
    s_cmp_ge_u32 s16, {int(o.get("cap", 1 << 22))}
    s_cbranch_scc1 K2_SPINOK
    ds_read_b128 v[20:23], v9
    s_waitcnt lgkmcnt(0)
    v_and_b32 v20, v20, v21
    v_and_b32 v22, v22, v23
    v_and_b32 v20, v20, v22
    s_nop 0
    v_readfirstlane_b32 s11, v20
    s_cmp_eq_u32 s11, 1
    s_cbranch_scc0 K2_SPIN
    K2_SPINOK:
    s_lshl_b32 s11, s{sCW}, 10
    s_add_u32 s11, s11, 5120
    v_lshlrev_b32 v15, 2, v{vL}
    v_add_u32 v15, s11, v15
    v_add_u32 v16, {2*CONV_SZ}, v15
    s_mov_b32 s12, 0x05040100
    s_mov_b32 s13, 0x07060302
    s_lshl_b32 s14, s2, 14
    s_lshl_b32 s15, s{sCW}, 12
    s_add_u32 s14, s14, s15
    s_add_u32 s14, s14, {WS_YT}
    """)
    for it in range(4):
        r = 64 + 8*it
        e(f"""
        ds_read_b32 v{r}, v15 offset:{256*it}
        ds_read_b32 v{r+1}, v15 offset:{256*it+CONV_SZ}
        ds_read_b32 v{r+2}, v16 offset:{256*it}
        ds_read_b32 v{r+3}, v16 offset:{256*it+CONV_SZ}
        """)
    for it in range(4):
        r = 64 + 8*it
        e(f"""
        s_waitcnt lgkmcnt({4*(3-it)})
        v_perm_b32 v{r+4}, v{r+1}, v{r}, s12
        v_perm_b32 v{r+5}, v{r+3}, v{r+2}, s12
        v_perm_b32 v{r+6}, v{r+1}, v{r}, s13
        v_perm_b32 v{r+7}, v{r+3}, v{r+2}, s13
        buffer_store_dwordx4 {vr(r+4,4)}, v4, {sr(sWS,4)}, s14 offen offset:{1024*it} sc1
        """)
    e(f"""
    s_mul_i32 s11, s2, 3277
    s_lshr_b32 s11, s11, 16
    s_lshl_b32 s11, s11, 5
    v_mov_b32 v8, 1
    v_mov_b32 v9, s11
    s_waitcnt vmcnt(0)
    s_mov_b64 exec, 1
    buffer_atomic_add v8, v9, {sr(sDBG,4)}, 0 offen sc1
    s_endpgm
    """)

def gen(e, o):
    kernel_head(e, "k2_kernel")
    e("""
    s_cmp_ge_u32 s2, 256
    s_cbranch_scc1 K2_END
    v_lshrrev_b32 v2, 6, v0
    v_and_b32 v1, 63, v0
    s_nop 0
    v_readfirstlane_b32 s52, v2
    s_cmp_ge_u32 s52, 4
    s_cbranch_scc1 K2_CONV
    """)
    gemm_part(e, o)
    e("K2_CONV:")
    conv_part(e, o)
    e("K2_END:\ns_endpgm")
    return [f"; @launch kernel=k2_kernel grid=(256,1,1) block=(512,1,1) lds={K2_LDS}"], kernel_desc("k2_kernel", 256)
```

```python
import sys
from common import *
import k1
try:
    import k2
except ImportError:
    k2 = None
HEAD = open("cdna_kernels/%s.s.ref" % NAME).read().split("; Override launch geometry")[0]
def build(opts):
    e = E()
    launches = [f"; @launch kernel=k1_kernel grid=(256,1,1) block=(256,1,1) lds={k1.K1_LDS}"]
    k1.gen_k1(e, "k1_kernel")
    descs = kernel_desc("k1_kernel", 256)
    if k2 is not None:
        l, d = k2.gen(e, opts)
        launches += l
        descs += d
    return (HEAD + "\n".join(launches) + "\n.amdgcn_target \"amdgcn-amd-amdhsa--gfx950\"\n.text\n" + e.text()
            + ".section .rodata,\"a\"\n.p2align 6\n" + descs)
if __name__ == "__main__":
    out = sys.argv[1] if len(sys.argv) > 1 else "cdna_kernels/%s.s" % NAME
    opts = dict(a.split("=") for a in sys.argv[2:])
    open(out, "w").write(build(opts))
```

```python
import sys
from common import *
import k1
try:
    import k2
except ImportError:
    k2 = None
HEAD = open("cdna_kernels/%s.s.ref" % NAME).read().split("; Override launch geometry")[0]
def build(opts):
    e = E()
    launches = [f"; @launch kernel=k1_kernel grid=(256,1,1) block=(256,1,1) lds={k1.K1_LDS}"]
    k1.gen_k1(e, "k1_kernel")
    descs = kernel_desc("k1_kernel", 256)
    if k2 is not None:
        l, d = k2.gen(e, opts)
        launches += l
        descs += d
    seq = opts.get("seq")
    if seq:
        table = {"1": launches[0], "2": launches[1],
                 "e": "; @launch kernel=e_kernel grid=(256,1,1) block=(256,1,1) lds=0"}
        launches = [table[c] for c in seq]
        if "e" in seq:
            kernel_head(e, "e_kernel"); e("s_endpgm")
            descs += kernel_desc("e_kernel", 32)
    return (HEAD + "\n".join(launches) + "\n.amdgcn_target \"amdgcn-amd-amdhsa--gfx950\"\n.text\n" + e.text()
            + ".section .rodata,\"a\"\n.p2align 6\n" + descs)
if __name__ == "__main__":
    out = sys.argv[1] if len(sys.argv) > 1 else "cdna_kernels/%s.s" % NAME
    opts = dict(a.split("=") for a in sys.argv[2:])
    open(out, "w").write(build(opts))
```
